```python
import torch

def _softmax(x, axis=-1):
    return torch.softmax(x, dim=axis)
def _gelu(x):
    return torch.nn.functional.gelu(x, approximate="tanh")
def _silu(x):
    return torch.nn.functional.silu(x)
def _sigmoid(x):
    return torch.sigmoid(x)
def _layernorm(x, axis=-1, eps=1e-5):
    m = x.mean(dim=axis, keepdim=True)
    v = x.var(dim=axis, keepdim=True, unbiased=False)
    return (x - m) / torch.sqrt(v + eps)
def _scatter_add(tgt, idx, src, axis=0):
    return tgt.clone().index_add_(axis, idx, src)
def _segment_sum(src, seg, n):
    out = torch.zeros((n,) + src.shape[1:], dtype=src.dtype)
    return out.index_add_(0, seg, src)
def _pad(x, pw):
    flat = tuple(v for pair in reversed(pw) for v in pair)
    return torch.nn.functional.pad(x, flat)

kernel_name = 'parallel_sum__ssm_conv_s4d__dense_activation_relu__prompt'

def setup_inputs():

    _w = (lambda a: (lambda t: t.to(torch.bfloat16) if t.is_floating_point() else t)(torch.as_tensor(a)))
    def _A_setup():
        Bsz, L, D, N = 1, 2048, 576, 128
        return {
            "u": _w((lambda *s: torch.randn(*s, dtype=torch.bfloat16) * 0.05)(Bsz, L, D)),
            "log_A_real": _w((lambda *s: torch.randn(*s, dtype=torch.bfloat16) * 3.2)(D, N) * 0.5),
            "A_imag": _w((lambda *s: torch.randn(*s, dtype=torch.bfloat16) * 0.2)(D, N) * 3.14),
            "C_real": _w((lambda *s: torch.randn(*s, dtype=torch.bfloat16) * 3.2)(D, N) / N ** 0.5),
            "C_imag": _w((lambda *s: torch.randn(*s, dtype=torch.bfloat16) * 3.2)(D, N) / N ** 0.5),
            "log_dt": _w((lambda *s: torch.randn(*s, dtype=torch.bfloat16) * 0.2)(D) * 0.5 - 4.0),
            "D_skip": _w((lambda *s: torch.randn(*s, dtype=torch.bfloat16) * 0.4)(D)),
        }
    _A_in = _A_setup()

    def _B_setup():
        B, S, D, Dff = 1, 2048, 576, 4608
        return {
            "x": _w((lambda *s: torch.randn(*s, dtype=torch.bfloat16) * 0.05)(B, S, D)),
            "w1": _w((lambda *s: torch.randn(*s, dtype=torch.bfloat16) * 0.05)(D, Dff)),
            "w2": _w((lambda *s: torch.randn(*s, dtype=torch.bfloat16) * 0.05)(Dff, D)),
        }
    _B_in = _B_setup()

    return {
        "A_u": _A_in["u"],
        "A_log_A_real": _A_in["log_A_real"],
        "A_A_imag": _A_in["A_imag"],
        "A_C_real": _A_in["C_real"],
        "A_C_imag": _A_in["C_imag"],
        "A_log_dt": _A_in["log_dt"],
        "A_D_skip": _A_in["D_skip"],
        "B_x": _B_in["x"],
        "B_w1": _B_in["w1"],
        "B_w2": _B_in["w2"],
    }

def reference(A_u, A_log_A_real, A_A_imag, A_C_real, A_C_imag, A_log_dt, A_D_skip, B_x, B_w1, B_w2):
    def _A_ref(u, log_A_real, A_imag, C_real, C_imag, log_dt, D_skip):
        L = u.shape[1]
        dt = torch.exp(log_dt)
        A = -torch.exp(log_A_real) + 1j * A_imag
        C = (C_real + 1j * C_imag) * dt[:, None]
        pos = (lambda x, dt: x.to(dt))(torch.arange(L), log_dt.dtype)
        P = torch.exp((A * dt[:, None])[:, :, None] * pos[None, None, :])
        K = 2.0 * torch.einsum("dn,dnl->dl", C, P).real
        L2 = 2 * L
        u_t = (lambda x, *d: x.permute(*d))(u, 0, 2, 1)
        Kf = (lambda x, *a, **k: torch.fft.rfft(x.float(), *a, **k))(K, L2)
        Uf = (lambda x, *a, **k: torch.fft.rfft(x.float(), *a, **k))(u_t, L2)
        y = (lambda x, *a, **k: torch.fft.irfft(x, *a, **k).to(torch.bfloat16))(Uf * Kf[None, :, :], L2)[:, :, :L]
        y = (lambda x, *d: x.permute(*d))(y, 0, 2, 1)
        return y + u * D_skip[None, None, :]

    def _B_ref(x, w1, w2):
        h = torch.einsum("bsd,df->bsf", x, w1)
        zero = torch.zeros_like(h)
        h = torch.maximum(h, zero)
        return torch.einsum("bsf,fd->bsd", h, w2)

    x = A_u
    xn = _layernorm(x, axis=-1)
    return x + _A_ref(xn, A_log_A_real, A_A_imag, A_C_real, A_C_imag, A_log_dt, A_D_skip) + _B_ref(xn, B_w1, B_w2)
```

```python
KNAME = "parallel_sum__ssm_conv_s4d__dense_activation_relu__prompt_kernel"
class Asm:
    def __init__(self):
        self.lines = []
        self.vm = []
        self.lg = []
        self.iss_vm = set(); self.iss_lg = set()
    def __call__(self, s):
        for l in s.split("\n"):
            l = l.strip()
            if l:
                self.lines.append(l if (l.endswith(":") or l.startswith(".")) else "    " + l)
    def text(self):
        return "\n".join(self.lines) + "\n"
    def vmem(self, s, tag=None):
        self(s); self.vm.append(tag); self.iss_vm.add(tag)
    def lds(self, s, tag=None):
        self(s); self.lg.append(tag); self.iss_lg.add(tag)
    @staticmethod
    def _need(q, tags):
        idx = -1
        for i, t in enumerate(q):
            if t in tags: idx = i
        return idx
    def wait(self, vm=(), lg=()):
        parts = []
        if vm != "all":
            for t in vm: assert t in self.iss_vm, ("vm tag never issued", t)
        if lg != "all":
            for t in lg: assert t in self.iss_lg, ("lg tag never issued", t)
        if vm == "all":
            if self.vm: parts.append("vmcnt(0)"); self.vm = []
        else:
            i = self._need(self.vm, set(vm))
            if i >= 0:
                n = len(self.vm) - 1 - i
                if n > 63: n = 63
                parts.append(f"vmcnt({n})"); self.vm = self.vm[len(self.vm) - n:] if n else []
        if lg == "all":
            if self.lg: parts.append("lgkmcnt(0)"); self.lg = []
        else:
            i = self._need(self.lg, set(lg))
            if i >= 0:
                n = len(self.lg) - 1 - i
                if n > 15: n = 15
                parts.append(f"lgkmcnt({n})"); self.lg = self.lg[len(self.lg) - n:] if n else []
        if parts: self("s_waitcnt " + " ".join(parts))
    def reset(self):
        self.vm = []; self.lg = []
    def srd(self, d, lo, hi, size):
        self(f"s_mov_b32 s{d}, {lo}\ns_mov_b32 s{d+1}, {hi}\ns_mov_b32 s{d+2}, {size}\ns_mov_b32 s{d+3}, 0x20000")

def v(i, n=1):
    return f"v{i}" if n == 1 else f"v[{i}:{i+n-1}]"
def ar(i, n=1):
    return f"a{i}" if n == 1 else f"a[{i}:{i+n-1}]"
def sr(i, n=1):
    return f"s{i}" if n == 1 else f"s[{i}:{i+n-1}]"

def header(launch_lines):
    return "".join("; @launch " + l + "\n" for l in launch_lines) + '.amdgcn_target "amdgcn-amd-amdhsa--gfx950"\n.text\n'

def kernel_begin(name):
    return f".globl {name}\n.p2align 8\n.type {name},@function\n{name}:\n"

def kernel_desc(name, vgpr, accum, sgpr=102):
    return f""".section .rodata,"a"
.p2align 6
.amdhsa_kernel {name}
  .amdhsa_next_free_vgpr {vgpr}
  .amdhsa_next_free_sgpr {sgpr}
  .amdhsa_accum_offset {accum}
  .amdhsa_group_segment_fixed_size 0
  .amdhsa_kernarg_size 104
  .amdhsa_user_sgpr_count 2
  .amdhsa_user_sgpr_kernarg_segment_ptr 1
  .amdhsa_system_sgpr_workgroup_id_x 1
.end_amdhsa_kernel
.text
"""
```

```python
import re
TRANS = ("v_exp_f32","v_log_f32","v_rcp_f32","v_rsq_f32","v_sqrt_f32","v_sin_f32","v_cos_f32","v_rcp_iflag_f32")
def regs(tok):
    tok = tok.strip().lstrip("-").replace("|","")
    m = re.fullmatch(r"abs\((.*)\)", tok)
    if m: tok = m.group(1)
    m = re.fullmatch(r"([vas])(\d+)", tok)
    if m: return {(m.group(1), int(m.group(2)))}
    m = re.fullmatch(r"([vas])\[(\d+):(\d+)\]", tok)
    if m: return {(m.group(1), i) for i in range(int(m.group(2)), int(m.group(3))+1)}
    if tok == "vcc": return {("s","vcc")}
    if tok == "m0": return {("s","m0")}
    if tok == "exec": return {("s","exec")}
    return set()
class I: pass
def parse(line):
    line = line.split(";")[0].strip()
    if not line or line.endswith(":") or line.startswith("."): return None
    p = line.split(None, 1)
    op = p[0]; rest = p[1] if len(p) > 1 else ""
    ops = []
    depth = 0; cur = ""
    for ch in rest:
        if ch in "[(": depth += 1
        if ch in "])": depth -= 1
        if ch == "," and depth == 0: ops.append(cur.strip()); cur = ""
        else: cur += ch
    if cur.strip(): ops.append(cur.strip())
    mods = ""
    if ops:
        last = ops[-1].split(None, 1)
        ops[-1] = last[0]; mods = last[1] if len(last) > 1 else ""
    i = I(); i.op = op; i.line = line; i.mods = mods
    i.mfma = op.startswith("v_mfma"); i.valu = op.startswith("v_") and not i.mfma
    i.ds = op.startswith("ds_"); i.vmem = op.startswith(("buffer_","global_","flat_"))
    i.salu = op.startswith("s_")
    i.trans = op.replace("_e32","").replace("_e64","") in TRANS
    i.dpp = "_dpp" in op or "quad_perm" in mods or "row_" in mods or "wave_" in mods
    R = [regs(o) for o in ops]
    i.w = set(); i.r = set(); i.ab = set(); i.c = set(); i.sdata = set()
    if i.mfma:
        i.w = R[0]; i.ab = R[1] | R[2]; i.c = R[3]; i.r = i.ab | i.c
        i.passes = 8 if "32x32x16" in op else 4
    elif i.valu:
        if op.startswith("v_permlane") and "swap" in op:
            i.w = R[0] | R[1]; i.r = R[0] | R[1]
        elif op.startswith(("v_add_co","v_sub_co","v_addc_co","v_subb_co")):
            i.w = R[0] | R[1]; i.r = set().union(*R[2:])
        else:
            i.w = R[0] if R else set(); i.r = set().union(*R[1:]) if len(R) > 1 else set()
            if op.startswith(("v_fmac","v_dot2c","v_pk_fmac")): i.r |= R[0]
            if op.startswith("v_cmpx"): i.w |= {("s","exec")}
    elif i.ds:
        if op.startswith("ds_read") or "permute" in op or "swizzle" in op: i.w = R[0]; i.r = set().union(*R[1:])
        else: i.r = set().union(*R)
    elif i.vmem:
        if op in ("buffer_inv", "buffer_wbl2"): pass
        elif "load" in op and " lds" not in (" " + mods) and "lds" not in op:
            i.w = R[0]; i.r = set().union(*R[1:])
        elif "load" in op:
            i.r = set().union(*R) | {("s","m0")}; i.ldsdma = True
        else:
            i.r = set().union(*R)
            if "sc0" in mods and "atomic" in op: i.w = R[0]
            if op.endswith(("x3","x4")): i.sdata = R[0] if op.startswith("buffer") else R[1]
    elif i.salu:
        if op.startswith(("s_cmp","s_cbranch","s_branch","s_waitcnt","s_barrier","s_nop","s_endpgm","s_sleep","s_setprio","s_bitcmp")):
            i.r = set().union(*R) if R else set()
        else:
            i.w = R[0] if R else set(); i.r = set().union(*R[1:]) if len(R) > 1 else set()
            if "saveexec" in op: i.w |= {("s","exec")}
    i.states = 1
    if op == "s_nop": i.states = int(ops[0]) + 1
    return i
def check(text, verbose=True):
    ins = []
    for n, l in enumerate(text.split("\n")):
        x = parse(l)
        if x: x.n = n + 1; ins.append(x)
    errs = []
    for k, b in enumerate(ins):
        dist = 0
        for j in range(k - 1, max(-1, k - 24), -1):
            a = ins[j]
            need = 0; why = ""
            vw = {r for r in a.w if r[0] in "va"}; sw = {r for r in a.w if r[0] == "s"}
            if a.mfma:
                p = a.passes
                if b.mfma:
                    if vw & b.ab: need, why = (8 if p == 4 else 12), "mfma D->AB"
                    elif vw & b.c and not (vw == b.c and b.passes == p): need, why = (6 if p == 4 else 10), "mfma D->C overlap"
                    elif vw & b.w and not (vw == b.c and b.passes == p): need, why = (6 if p == 4 else 10), "mfma D->D waw"
                elif (b.valu or b.ds or b.vmem) and (vw & (b.r | b.w)): need, why = (8 if p == 4 else 12), "mfma D->valu/mem"
                if b.valu and (a.c & b.w):
                    n2 = 3 if p == 4 else 7
                    if n2 > need: need, why = n2, "mfma C war"
            elif a.valu:
                if b.mfma and (vw & b.r): need, why = 2, "valu->mfma"
                if b.mfma and ("s","exec") in sw: need, why = 4, "exec->mfma"
                if a.trans and b.valu and not b.trans and (vw & b.r): need, why = max(need,1), "trans->valu"
                if b.op.startswith(("v_readfirstlane","v_readlane")) and (vw & b.r): need, why = max(need,1), "valu->readlane"
                if b.op.startswith("v_permlane") and (vw & b.r): need, why = 2, "valu->permlane"
                if b.valu and b.dpp and (vw & b.r): need, why = 2, "valu->dpp"
                if b.vmem and (sw & b.r): need, why = 5, "valu sgpr->vmem"
                if b.valu and (sw & b.r): need, why = max(need,2), "valu sgpr->valu"
                if b.op.startswith("v_cndmask") and ("s","vcc") in sw and "vcc" in b.line: need, why = max(need,2), "vcc->cndmask"
                if ("op_sel" in a.mods and not a.op.startswith("v_pk")) and b.valu and (vw & b.r): need, why = max(need,1), "opsel"
            elif a.salu:
                if ("s","m0") in sw and getattr(b, "ldsdma", False): need, why = 1, "m0->dma"
            if a.vmem and a.sdata and (b.valu or b.mfma) and (a.sdata & b.w): need, why = max(need,2), "store data war"
            if a.vmem and a.sdata and (b.ds or b.vmem) and (a.sdata & b.w): need, why = max(need,1), "store data war"
            if a.ds and a.op in ("ds_write_b128","ds_write_b96") and False: pass
            if need > dist:
                errs.append(f"line {b.n}: '{b.line}' needs {need} states after line {a.n} '{a.line}' has {dist} ({why})")
            dist += a.states
            if dist >= 20: break
    if verbose:
        for e in errs[:40]: print("HAZARD", e)
    return errs
if __name__ == "__main__":
    import sys
    e = check(open(sys.argv[1]).read())
    print(len(e), "hazards")
```

```python
from asmlib import *
import struct
L, D, F, N = 2048, 576, 4608, 128
XB = L * D * 2
WB = D * F * 2
OFF_XN = 0
OFF_XT = XB
OFF_YT = 2 * XB
OFF_P = 3 * XB
NSPLIT = 12
FS = F // NSPLIT
def f2u(x): return struct.unpack("<I", struct.pack("<f", x))[0]
def hexf(x): return hex(f2u(x))

def add64(a, d, base, off):
    a(f"s_add_u32 s{d}, s{base}, {off}\ns_addc_u32 s{d+1}, s{base+1}, 0")

def bf16_round(a, dst, src):
    a(f"v_cvt_pk_bf16_f32 v{dst}, v{src}, v{src}\nv_and_b32 v{dst}, 0xffff0000, v{dst}")

def dpp_sum8(a, r, t):
    for m in ("quad_perm:[1,0,3,2]", "quad_perm:[2,3,0,1]", "row_half_mirror"):
        a(f"s_nop 1\nv_add_f32_dpp v{r}, v{r}, v{r} {m} row_mask:0xf bank_mask:0xf")

def emit_ln(a, s_blk, s_wave, sX, sXN, sXT, lds_base=0, write_xn=True, sc=""):
    S = 1168
    a(f"""
    v_lshrrev_b32 v1, 3, v0
    v_and_b32 v2, 7, v0
    s_lshl_b32 s40, s{s_wave}, 3
    v_add_u32 v1, s40, v1
    s_lshl_b32 s41, s{s_blk}, 5
    v_add_u32 v3, s41, v1
    s_movk_i32 s42, 1152
    v_mul_lo_u32 v3, v3, s42
    v_lshl_add_u32 v3, v2, 4, v3
    s_movk_i32 s42, {S}
    v_mul_lo_u32 v4, v1, s42
    v_lshl_add_u32 v4, v2, 4, v4
    """)
    if lds_base: a(f"v_add_u32 v4, {lds_base}, v4")
    for i in range(9):
        a.vmem(f"buffer_load_dwordx4 {v(16+4*i,4)}, v3, {sr(sX,4)}, 0 offen offset:{128*i}", ("lnx", i))
    for i in range(9):
        a.wait(vm=[("lnx", i)])
        for j in range(4):
            a(f"v_lshlrev_b32 v{64+8*i+2*j}, 16, v{16+4*i+j}\nv_and_b32 v{65+8*i+2*j}, 0xffff0000, v{16+4*i+j}")
        for j in range(4):
            if i == 0: a(f"v_add_f32 v{8+j}, v{64+2*j}, v{65+2*j}")
            else: a(f"v_add_f32 v{8+j}, v{8+j}, v{64+8*i+2*j}\nv_add_f32 v{8+j}, v{8+j}, v{65+8*i+2*j}")
    a("v_add_f32 v8, v8, v9\nv_add_f32 v10, v10, v11\nv_add_f32 v8, v8, v10")
    dpp_sum8(a, 8, 9)
    a(f"v_mul_f32 v8, {hexf(1.0/576)}, v8")
    for e in range(72):
        t = 136 + (e % 4)
        a(f"v_sub_f32 v{t}, v{64+e}, v8")
        if e < 4: a(f"v_mul_f32 v{12+e}, v{t}, v{t}")
        else: a(f"v_fmac_f32 v{12+e%4}, v{t}, v{t}")
    a("v_add_f32 v12, v12, v13\nv_add_f32 v14, v14, v15\nv_add_f32 v12, v12, v14")
    dpp_sum8(a, 12, 9)
    a(f"v_mul_f32 v12, {hexf(1.0/576)}, v12")
    bf16_round(a, 12, 12)
    a(f"v_add_f32 v12, {hexf(1e-5)}, v12")
    bf16_round(a, 12, 12)
    a("v_sqrt_f32 v12, v12\ns_nop 0")
    bf16_round(a, 12, 12)
    a("v_rcp_f32 v12, v12")
    bf16_round(a, 8, 8)
    a("v_mul_f32 v13, v8, v12")
    for i in range(9):
        for j in range(4):
            e = 64 + 8*i + 2*j
            a(f"v_fma_f32 v{e}, v{e}, v12, -v13\nv_fma_f32 v{e+1}, v{e+1}, v12, -v13\nv_cvt_pk_bf16_f32 v{16+4*i+j}, v{e}, v{e+1}")
        if write_xn:
            a.vmem(f"buffer_store_dwordx4 {v(16+4*i,4)}, v3, {sr(sXN,4)}, 0 offen offset:{128*i} {sc}", "st")
        a.lds(f"ds_write_b128 v4, {v(16+4*i,4)} offset:{128*i}", "lnw")
    a(f"""
    v_lshrrev_b32 v5, 4, v0
    v_bfe_u32 v6, v0, 2, 2
    v_lshl_add_u32 v6, v5, 3, v6
    v_sub_u32 v6, 27, v6
    s_movk_i32 s42, {S}
    v_mul_lo_u32 v6, v6, s42
    v_and_b32 v7, 3, v0
    v_lshl_add_u32 v6, v7, 3, v6
    s_mul_i32 s43, s{s_wave}, 288
    v_add_u32 v6, s43, v6
    """)
    if lds_base: a(f"v_add_u32 v6, {lds_base}, v6")
    a(f"""
    v_and_b32 v7, 15, v0
    s_mul_i32 s43, s{s_wave}, 144
    v_add_u32 v7, s43, v7
    v_lshlrev_b32 v7, 12, v7
    v_lshl_add_u32 v7, v5, 4, v7
    s_lshl_b32 s43, s{s_blk}, 6
    s_sub_u32 s43, 4032, s43
    v_add_u32 v7, s43, v7
    """)
    a.wait(lg="all")
    a("s_barrier")
    for T in range(9):
        a.lds(f"ds_read_b64_tr_b16 {v(64+4*T,2)}, v6 offset:{4*S + 32*T}", ("tr", T))
        a.lds(f"ds_read_b64_tr_b16 {v(66+4*T,2)}, v6 offset:{32*T}", ("tr", T))
    for T in range(9):
        a.wait(lg=[("tr", T)])
        a(f"s_mov_b32 s43, {T*16*4096}")
        a.vmem(f"buffer_store_dwordx4 {v(64+4*T,4)}, v7, {sr(sXT,4)}, s43 offen {sc}", "st")

class MLP:
    ACC = 16
    WF = 80
    XV = 96
    TMP = 128
    vD0, vD1 = 2, 3
    vE0, vE1 = 4, 5
    vRA0, vRA1 = 6, 7
    vRB0, vRB1 = 8, 9
    vX = 144
    vXR = 148
    vH, vHW, vP = 10, 11, 12
    sX, sW1, sW2, sP = 12, 16, 20, 24
    sM0W, sM0X, sT = 28, 29, 30
    HB = 65536
    def xreg(self, ks, mt):
        i = 4*ks + mt
        return ar(4*i, 4) if i < 64 else v(self.XV + 4*(i-64), 4)
    def hreg(self, ks, mt): return ar(16*ks + 4*mt, 4)

    def setup(self, a, s_t, s_s, s_wave):
        M = self
        a(f"s_mul_i32 s40, s{s_t}, {128*1152}")
        add64(a, M.sX, 4, "s40")
        a(f"s_mov_b32 s{M.sX+2}, {128*1152}\ns_mov_b32 s{M.sX+3}, 0x20000")
        a(f"s_mul_i32 s40, s{s_s}, {FS*2}")
        add64(a, M.sW1, 6, "s40")
        a(f"s_sub_u32 s{M.sW1+2}, {WB}, s40\ns_mov_b32 s{M.sW1+3}, 0x20000")
        a(f"s_mul_i32 s40, s{s_s}, {FS*1152}")
        add64(a, M.sW2, 8, "s40")
        a(f"s_mov_b32 s{M.sW2+2}, {FS*1152}\ns_mov_b32 s{M.sW2+3}, 0x20000")
        a(f"""
        s_and_b32 s41, s{s_wave}, 1
        s_lshr_b32 s42, s{s_wave}, 1
        s_lshl_b32 s43, s41, 1
        s_add_u32 s43, s43, s42
        s_lshl_b32 s43, s43, 2
        s_mul_i32 s40, s{s_t}, 144
        s_add_u32 s40, s40, s43
        s_mul_i32 s40, s40, {NSPLIT}
        s_add_u32 s40, s40, s{s_s}
        s_lshl_b32 s40, s40, 10
        """)
        add64(a, M.sP, 10, "s40")
        a(f"s_sub_u32 s{M.sP+2}, {NSPLIT*XB}, s40\ns_mov_b32 s{M.sP+3}, 0x20000")
        a(f"s_lshl_b32 s{M.sM0W}, s{s_wave}, 11")
        a(f"s_lshl_b32 s{M.sM0X}, s{s_wave}, 12\ns_add_u32 s{M.sM0X}, s{M.sM0X}, {M.HB}")
        a(f"""
        v_lshrrev_b32 v13, 3, v0
        v_and_b32 v14, 7, v0
        s_lshl_b32 s43, s{s_wave}, 5
        s_movk_i32 s44, 1152
        """)
        for i in range(4):
            a(f"""
            v_add_u32 v15, {8*i}, v13
            v_bfe_u32 v1, v15, 1, 3
            v_xor_b32 v1, v1, v14
            v_add_u32 v15, s43, v15
            v_mul_lo_u32 v15, v15, s44
            v_lshl_add_u32 v{M.vX+i}, v1, 4, v15
            """)
            if i: a(f"v_subrev_u32 v{M.vX+i}, {1024*i}, v{M.vX+i}")
        a(f"""
        s_lshl_b32 s43, s{s_wave}, 3
        v_add_u32 v13, s43, v13
        v_bfe_u32 v1, v13, 1, 1
        v_bfe_u32 v15, v13, 3, 1
        v_lshl_or_b32 v1, v15, 1, v1
        v_lshlrev_b32 v1, 1, v1
        v_xor_b32 v1, v1, v14
        s_movk_i32 s45, 9216
        v_mul_lo_u32 v15, v13, s45
        v_lshl_add_u32 v{M.vD0}, v1, 4, v15
        v_add_u32 v{M.vD1}, {32*9216-1024}, v{M.vD0}
        v_bfe_u32 v1, v13, 1, 2
        v_lshlrev_b32 v1, 1, v1
        v_xor_b32 v1, v1, v14
        v_mul_lo_u32 v15, v13, s44
        v_lshl_add_u32 v{M.vE0}, v1, 4, v15
        v_add_u32 v{M.vE1}, {32*1152-1024}, v{M.vE0}
        """)
    def setup2(self, a):
        M = self
        a(f"""
        v_lshrrev_b32 v13, 4, v0
        v_bfe_u32 v14, v0, 2, 2
        v_and_b32 v15, 3, v0
        s_lshl_b32 s43, s42, 1
        v_lshrrev_b32 v1, 1, v14
        v_and_b32 v{M.vRB1}, 1, v13
        v_lshl_or_b32 v1, v{M.vRB1}, 1, v1
        v_xor_b32 v1, s43, v1
        v_lshlrev_b32 v1, 5, v1
        v_lshl_or_b32 v1, v15, 3, v1
        v_lshl_or_b32 v1, v14, 7, v1
        v_lshl_or_b32 v{M.vRA0}, v13, 11, v1
        v_xor_b32 v{M.vRA1}, 32, v{M.vRA0}
        v_lshl_or_b32 v1, v{M.vRB1}, 9, v1
        v_lshrrev_b32 v13, 1, v13
        v_lshl_or_b32 v{M.vRB0}, v13, 11, v1
        v_xor_b32 v{M.vRB1}, 32, v{M.vRB0}
        """)
        a(f"""
        v_and_b32 v13, 15, v0
        v_lshrrev_b32 v14, 4, v0
        v_lshrrev_b32 v15, 1, v13
        v_xor_b32 v14, v14, v15
        v_lshlrev_b32 v14, 4, v14
        v_lshl_or_b32 v14, v13, 7, v14
        s_lshl_b32 s43, s41, 13
        s_add_u32 s43, s43, {M.HB}
        v_add_u32 v{M.vXR}, s43, v14
        v_xor_b32 v{M.vXR+1}, 64, v{M.vXR}
        v_add_u32 v{M.vXR+2}, 0x10000, v{M.vXR}
        v_add_u32 v{M.vXR+3}, 0x10000, v{M.vXR+1}
        v_lshlrev_b32 v{M.vP}, 4, v0
        s_mul_i32 s43, s41, 49152
        s_add_u32 s43, s43, {M.HB}
        v_add_u32 v{M.vH}, s43, v{M.vP}
        s_lshl_b32 s43, s42, 12
        v_add_u32 v{M.vHW}, s43, v{M.vH}
        """)
    def w_src(self, st):
        if st < 54:
            c, j = divmod(st, 9)
            return self.sW1, self.vD0, self.vD1, 64*j*9216 + 128*c
        c, j = divmod(st - 54, 6)
        return self.sW2, self.vE0, self.vE1, 64*j*1152 + 128*c
    def dma_w(self, a, st, half):
        srd, v0_, v1_, off = self.w_src(st)
        if half == 0:
            a(f"s_add_u32 m0, s{self.sM0W}, {(st % 8)*8192}\ns_mov_b32 s{self.sT}, {off}")
            a.vmem(f"buffer_load_dwordx4 v{v0_}, {sr(srd,4)}, s{self.sT} offen lds", ("w", st))
        else:
            a.vmem(f"buffer_load_dwordx4 v{v1_}, {sr(srd,4)}, s{self.sT} offen offset:1024 lds", ("w", st))
    def dma_x(self, a, j, i):
        if i == 0:
            a(f"s_add_u32 m0, s{self.sM0X}, {(j % 6)*16384}\ns_movk_i32 s{self.sT}, {128*j}")
        o = f" offset:{1024*i}" if i else ""
        a.vmem(f"buffer_load_dwordx4 v{self.vX+i}, {sr(self.sX,4)}, s{self.sT} offen{o} lds", ("x", j))
    def rd_w(self, a, phi, half):
        ks, tile = divmod(phi, 2); st, kk = divmod(ks, 2)
        f = self.WF + 4*(phi % 4) + 2*half
        if st < 54: base = self.vRA0 + tile; off = (st % 8)*8192 + kk*1024 + half*512
        else: base = self.vRB0 + tile; off = (st % 8)*8192 + kk*1024 + half*4096
        a.lds(f"ds_read_b64_tr_b16 {v(f,2)}, v{base} offset:{off}", ("w", phi))
    def rd_x(self, a, ks, mt):
        j, kk = divmod(ks, 2); sl = j % 6
        base = self.vXR + kk + (2 if sl >= 4 else 0)
        off = (sl % 4)*16384 + mt*2048
        a.lds(f"ds_read_b128 {self.xreg(ks, mt)}, v{base} offset:{off}", ("x", ks, mt))
    def rd_h(self, a, ks, mt):
        assert self.hw_bar[(ks//2, mt)] < self.nbar, ("h read before barrier", ks, mt)
        a.lds(f"ds_read_b128 {self.hreg(ks, mt)}, v{self.vH} offset:{(ks*4+mt)*1024}", ("h", ks, mt))

    def body(self, a, st_mod="", after_store=None, final=None):
        M = self
        NST = 108; NPHI = 4*NST
        M.nbar = 0; M.hw_bar = {}
        for j in range(6):
            for i in range(4): M.dma_x(a, j, i)
            M.dma_w(a, j, 0); M.dma_w(a, j, 1)
        for st in (6, 7):
            M.dma_w(a, st, 0); M.dma_w(a, st, 1)
        M.setup2(a)
        bars = list(range(0, 10)) + list(range(10, NST, 2))
        bars = sorted(set(bars))
        nextbar = {n: (bars[i+1] if i+1 < len(bars) else NST) for i, n in enumerate(bars)}
        q = []
        dq = []
        state = {"wiss": 8}
        def barrier(n):
            need = [("w", s) for s in range(n, nextbar[n])]
            if n < 9: need.append(("x", n))
            lg = [t for t in a.lg if t and t[0] in ("x", "hw")]
            a.wait(vm=need, lg=lg)
            a("s_barrier"); M.nbar += 1
            if after_store: after_store(a, n)
            if n < 9:
                for ks in (2*n, 2*n+1):
                    for mt in range(4): q.append(lambda ks=ks, mt=mt: M.rd_x(a, ks, mt))
                if 1 <= n <= 3:
                    dq.append(lambda n=n: [M.dma_x(a, n+5, i) for i in (0, 1)])
                    dq.append(lambda n=n: [M.dma_x(a, n+5, i) for i in (2, 3)])
            while state["wiss"] <= n + 6 and state["wiss"] < NST:
                st = state["wiss"]; state["wiss"] += 1
                dq.append(lambda st=st: M.dma_w(a, st, 0)); dq.append(lambda st=st: M.dma_w(a, st, 1))
        def chunk_info(phi):
            ks = phi // 2
            if ks < 108: c, k = divmod(ks, 18); return 0, c, k
            c, k = divmod(ks - 108, 12); return 1, c, k
        def epilogue_tasks(ph, c):
            gi = c if ph == 0 else 6 + c
            acc = M.ACC + 32*(gi % 2)
            t = []
            for mt in range(4):
                T = M.TMP + 4*mt
                for j in range(4):
                    src = acc + 16*(j//2) + 4*mt + 2*(j % 2)
                    t.append(lambda T=T, j=j, src=src: a(f"v_cvt_pk_bf16_f32 v{T+j}, v{src}, v{src+1}"))
                if ph == 0:
                    for j in range(4): t.append(lambda T=T, j=j: a(f"v_pk_max_i16 v{T+j}, v{T+j}, 0"))
                    def hw_(T=T, mt=mt):
                        assert M.nbar >= 10
                        M.hw_bar[(c, mt)] = M.nbar
                        a.lds(f"ds_write_b128 v{M.vHW}, {v(T,4)} offset:{(8*c+mt)*1024}", ("hw", c, mt))
                    t.append(hw_)
                else:
                    def st_(T=T, mt=mt):
                        a(f"s_mov_b32 s31, {(c*16+mt)*NSPLIT*1024}")
                        a.vmem(f"buffer_store_dwordx4 {v(T,4)}, v{M.vP}, {sr(M.sP,4)}, s31 offen {st_mod}", ("p", c))
                    t.append(st_)
            return t
        barrier(0)
        while q: q.pop(0)()
        for p in range(3): M.rd_w(a, p, 0); M.rd_w(a, p, 1)
        pend_epi = None
        hq = []
        for phi in range(NPHI):
            ph, c, k = chunk_info(phi); tile = phi % 2
            gi = c if ph == 0 else 6 + c
            acc = M.ACC + 32*(gi % 2) + 16*tile
            f = M.WF + 4*(phi % 4)
            if tile == 0 and k == 0 and gi > 0:
                pend_epi = (0, c-1) if ph == 0 else ((0, 5) if c == 0 else (1, c-1))
                pend_at = phi + (2 if gi != 1 else 4)
            if pend_epi and phi >= pend_at:
                q.extend(epilogue_tasks(*pend_epi)); pend_epi = None
            if ph == 0 and c == 5 and tile == 0 and 7 <= k <= 16:
                for mt in range(4): q.append(lambda ks=k-7, mt=mt: M.rd_h(a, ks, mt))
            if ph == 1 and c == 0 and tile == 0 and k in (7, 8):
                for mt in range(4): q.append(lambda ks=k+3, mt=mt: M.rd_h(a, ks, mt))
            for mt in range(4):
                need = [("w", phi)] if mt == 0 else []
                if ph == 0 and c == 0 and tile == 0: need.append(("x", k, mt))
                if ph == 1 and c == 0 and tile == 0: need.append(("h", k, mt))
                a.wait(lg=need)
                B = M.xreg(k, mt) if ph == 0 else M.hreg(k, mt)
                C = "0" if k == 0 else v(acc+4*mt, 4)
                a(f"v_mfma_f32_16x16x32_bf16 {v(acc+4*mt,4)}, {v(f,4)}, {B}, {C}")
                if mt == 0:
                    if (phi + 3) % 4 == 0 and (phi + 3)//4 in nextbar and phi + 3 < NPHI:
                        barrier((phi + 3)//4)
                    if phi + 3 < NPHI: M.rd_w(a, phi+3, 0); M.rd_w(a, phi+3, 1)
                elif mt == 2 and dq:
                    dq.pop(0)()
                else:
                    n = 2
                    while q and n: q.pop(0)(); n -= 1
            if ph == 0 and c == 0 and phi % 4 == 3:
                while q: q.pop(0)()
                while dq: dq.pop(0)()
        assert not q and not dq
        a("s_nop 7")
        for t in epilogue_tasks(1, 8): t()

class Conv:
    RS = 528
    HI = [0,1,2,3,4,5,6,7, 256,258,260,262,264, 512,516,520, 768,772,776, 1024,1032,1280,1288,1536,1544,1792,1800]
    IDX = {0:0,1:1,2:2,3:3,4:4,5:5,6:6,7:7, 8:256,9:258,10:260, 12:260,13:262,14:264, 11:512,16:516,17:520, 15:768,20:772,21:776,
           18:1024,19:1032,24:1280,25:1288, 22:1536,23:1544,28:1792,29:1800}
    WAVE_LDS = 36 * 1024
    OPS = 0
    KB = 59 * 528 + 16
    US = 4160
    sLA, sAI, sCR, sCI, sXT, sYT = 12, 16, 20, 24, 28, 32
    def setup(self, a, s_wave):
        C = self
        a(f"s_mul_i32 s46, s{s_wave}, {C.WAVE_LDS}")
        a(f"""
        v_lshlrev_b32 v3, 2, v0
        v_lshl_add_u32 v2, v0, 3, s46
        v_and_b32 v10, 31, v0
        v_lshrrev_b32 v11, 5, v0
        """)
        a("v_mov_b32 v4, 0")
        for idx in range(32):
            row = C.HI.index(C.IDX[idx]) if idx in C.IDX else 0
            if row:
                a(f"v_cmp_eq_u32 vcc, {idx}, v10\nv_mov_b32 v12, {row*C.RS}\ns_nop 0\nv_cndmask_b32 v4, v4, v12, vcc")
        a(f"""
        v_lshl_add_u32 v4, v11, 4, v4
        v_add_u32 v4, s46, v4
        s_movk_i32 s47, {C.RS}
        v_mul_lo_u32 v5, v10, s47
        v_lshl_add_u32 v5, v11, 4, v5
        v_add_u32 v5, {27*C.RS}, v5
        v_add_u32 v5, s46, v5
        """)
        a(f"""
        s_add_u32 s47, s46, {C.KB + 480}
        v_lshl_add_u32 v9, v10, 4, s47
        v_lshl_add_u32 v6, v11, 3, v9
        v_lshl_add_u32 v7, v11, 9, v9
        v_lshl_add_u32 v8, v11, 10, v9
        """)
        a(f"""
        v_and_b32 v10, 15, v0
        v_lshrrev_b32 v11, 4, v0
        v_lshlrev_b32 v9, 5, v10
        v_lshl_add_u32 v9, v11, 4, v9
        s_add_u32 s47, s46, {C.KB}
        v_add_u32 v9, s47, v9
        v_and_b32 v12, 3, v10
        v_sub_u32 v12, 3, v12
        s_movk_i32 s47, {C.US}
        v_mul_lo_u32 v12, v12, s47
        v_lshl_add_u32 v12, v11, 4, v12
        v_lshrrev_b32 v13, 2, v10
        v_lshlrev_b32 v13, 3, v13
        v_sub_u32 v13, v12, v13
        v_add_u32 v13, 24, v13
        v_add_u32 v13, s46, v13
        """)
        a(f"""
        v_lshlrev_b32 v1, 4, v0
        v_add_u32 v14, s46, v1
        v_lshlrev_b32 v15, 5, v10
        v_lshl_add_u32 v15, v11, 3, v15
        """)
        a(f"""
        v_mov_b32 v16, 0
        v_mov_b32 v17, 0
        v_min_u32 v18, 59, v0
        v_lshlrev_b32 v18, 3, v18
        s_add_u32 s47, s46, {C.KB}
        v_add_u32 v18, s47, v18
        """)
        a.lds("ds_write_b64 v18, v[16:17]", "z")
        a("""
        s_mov_b32 s48, 0x55555555
        s_mov_b32 s49, 0x55555555
        s_mov_b32 s50, 1
        s_mov_b32 s51, 0
        s_mov_b32 s52, 0
        s_mov_b32 s53, 0x80000000
        """)
    def load_params(self, a, s_ch, P):
        C = self
        a(f"s_lshl_b32 s54, s{s_ch}, 8")
        for i, srd in enumerate((C.sLA, C.sAI, C.sCR, C.sCI)):
            a.vmem(f"buffer_load_dword v{P+i}, v3, {sr(srd,4)}, s54 offen", "par")
        a(f"s_lshl_b32 s54, s{s_ch}, 1")
        a.vmem(f"buffer_load_ushort v{P+4}, off, s[36:39], s54", "par")
        a.vmem(f"buffer_load_ushort v{P+5}, off, s[56:59], s54", "par")
    def load_u(self, a, s_ch, U, sc=""):
        C = self
        a(f"s_lshl_b32 s55, s{s_ch}, 12")
        for i in range(4):
            b = U + 10*i
            a.vmem(f"buffer_load_dwordx4 {v(b,4)}, v1, {sr(C.sXT,4)}, s55 offen offset:{1024*i} {sc}", "u")
            a.vmem(f"buffer_load_dwordx4 {v(b+4,4)}, v1, {sr(C.sXT,4)}, s55 offen offset:{1024*i+4} {sc}", "u")
            a.vmem(f"buffer_load_dword v{b+8}, v1, {sr(C.sXT,4)}, s55 offen offset:{1024*i+20} {sc}", "u")
    def cmul(self, a, d, x, w, t):
        a(f"v_pk_mul_f32 {v(t,2)}, {v(x,2)}, {v(w,2)} op_sel:[0,0] op_sel_hi:[0,1]")
        a(f"v_pk_fma_f32 {v(d,2)}, {v(x,2)}, {v(w,2)}, {v(t,2)} op_sel:[1,1,0] op_sel_hi:[1,0,1] neg_lo:[1,0,0]")
    def kgen(self, a, P):
        C = self
        LOG2E = 1.4426950408889634; INV2PI = 0.15915494309189535
        a.wait(vm=["par"])
        a(f"""
        v_lshlrev_b32 v16, 16, v{P+4}
        v_mul_f32 v16, {hexf(LOG2E)}, v16
        v_exp_f32 v16, v16
        v_lshlrev_b32 v17, 16, v{P+5}
        """)
        bf16_round(a, 16, 16)
        for n in range(2):
            def unp(dst, src):
                a(f"v_lshlrev_b32 v{dst}, 16, v{src}" if n == 0 else f"v_and_b32 v{dst}, 0xffff0000, v{src}")
            unp(18+n, P); a(f"v_mul_f32 v{18+n}, {hexf(LOG2E)}, v{18+n}\nv_exp_f32 v{18+n}, v{18+n}")
            unp(20+n, P+1); unp(24+2*n, P+2); unp(25+2*n, P+3)
            bf16_round(a, 18+n, 18+n)
            a(f"""
            v_mul_f32 v{18+n}, v{18+n}, v16
            v_mul_f32 v{18+n}, {hexf(-LOG2E)}, v{18+n}
            v_mul_f32 v{20+n}, v{20+n}, v16
            v_mul_f32 v{20+n}, {hexf(INV2PI)}, v{20+n}
            v_mul_f32 v{24+2*n}, v{24+2*n}, v16
            v_mul_f32 v{25+2*n}, v{25+2*n}, v16
            v_add_f32 v{24+2*n}, v{24+2*n}, v{24+2*n}
            v_add_f32 v{25+2*n}, v{25+2*n}, v{25+2*n}
            """)
        for wi, p in enumerate((1.0, 8.0, 256.0)):
            for n in range(2):
                d = 28 + 4*wi + 2*n
                a(f"""
                v_mul_f32 v22, {hexf(p)}, v{18+n}
                v_mul_f32 v23, {hexf(p)}, v{20+n}
                v_exp_f32 v22, v22
                v_fract_f32 v23, v23
                v_cos_f32 v{d}, v23
                v_sin_f32 v{d+1}, v23
                s_nop 0
                v_mul_f32 v{d}, v{d}, v22
                v_mul_f32 v{d+1}, v{d+1}, v22
                """)
        W1, W8, W256 = 28, 32, 36
        wr = [0]
        def put(row, r0, neg):
            t = 40 + 2*(wr[0] % 4); wr[0] += 1
            s = "-" if neg else ""
            a(f"v_cvt_pk_bf16_f32 v{t}, v{r0}, {s}v{r0+1}\nv_cvt_pk_bf16_f32 v{t+1}, v{r0+2}, {s}v{r0+3}")
            a.lds(f"ds_write_b64 v2, {v(t,2)} offset:{row*C.RS}", "op")
        lo = []; hi = []
        EA, EB = 48, 52
        def lo0():
            a(f"v_mov_b32 v{EA}, 1.0\nv_mov_b32 v{EA+1}, 0\nv_mov_b32 v{EA+2}, 1.0\nv_mov_b32 v{EA+3}, 0"); put(27, EA, False)
        lo.append(lo0)
        lo.append(lambda: put(28, W8, False))
        for j in range(2, 32):
            src = W8 if j == 2 else (EA if j % 2 == 1 else EB)
            dst = EA if j % 2 == 0 else EB
            def st(j=j, src=src, dst=dst):
                C.cmul(a, dst, src, W8, 56); C.cmul(a, dst+2, src+2, W8+2, 58); put(27+j, dst, False)
            lo.append(st)
        G = {0: 24}
        nxt = [64]
        def newreg():
            r = nxt[0]; nxt[0] += 4; return r
        hi.append(lambda: put(0, 24, True))
        order = [(p, p-1, W1) for p in range(1, 9)]
        order += [(256+x, x, W256) for x in (0, 2, 4, 6, 8)]
        for b in (512, 768): order += [(b+x, b-256+x, W256) for x in (0, 4, 8)]
        for b in (1024, 1280, 1536, 1792): order += [(b+x, b-256+x, W256) for x in (0, 8)]
        for p, s_, w in order:
            if p < 9: G[p] = newreg()
            else: G[p] = G[s_] if p >= 512 else newreg()
            def st(p=p, s_=s_, w=w):
                C.cmul(a, G[p], G[s_], w, 60); C.cmul(a, G[p]+2, G[s_]+2, w+2, 62)
                if p in C.HI: put(C.HI.index(p), G[p], True)
            hi.append(st)
        assert nxt[0] <= 120
        while lo or hi:
            if lo: lo.pop(0)()
            if hi: hi.pop(0)()
        a.wait(lg="all")
        FA, FB = 64, 80
        def rd(s_):
            a.lds(f"ds_read_b128 {v(FA+4*(s_%4),4)}, v4 offset:{32*s_}", ("kf", s_))
            a.lds(f"ds_read_b128 {v(FB+4*(s_%4),4)}, v5 offset:{32*s_}", ("kf", s_))
        for s_ in range(3): rd(s_)
        for s_ in range(16):
            a.wait(lg=[("kf", s_)])
            a(f"v_mfma_f32_32x32x16_bf16 v[48:63], {v(FA+4*(s_%4),4)}, {v(FB+4*(s_%4),4)}, {'0' if s_ == 0 else 'v[48:63]'}")
            if s_ + 3 < 16: rd(s_+3)
        a("v_cndmask_b32 v17, 0, v17, s[50:51]\ns_nop 10")
        a("v_add_f32 v48, v48, v17")
        D_ = lambda r: f"v{48+r}"
        a(f"v_cvt_pk_bf16_f32 v64, {D_(0)}, {D_(1)}\nv_cvt_pk_bf16_f32 v65, {D_(2)}, {D_(3)}")
        a.lds("ds_write_b64 v6, v[64:65]", "kw")
        a(f"v_cvt_pk_bf16_f32 v66, {D_(4)}, {D_(4)}\nv_cvt_pk_bf16_f32 v67, {D_(5)}, {D_(6)}")
        a.lds("ds_write_b64 v6, v[66:67] offset:512", "kw")
        a(f"""v_cvt_pk_bf16_f32 v68, {D_(7)}, {D_(7)}
        v_cvt_pk_bf16_f32 v69, {D_(7)}, {D_(8)}
        v_cvt_pk_bf16_f32 v70, {D_(8)}, {D_(8)}
        v_cvt_pk_bf16_f32 v71, {D_(9)}, {D_(9)}""")
        a.lds("ds_write_b128 v7, v[68:71] offset:1024", "kw")
        for b in range(2):
            r0, r1 = 10 + 2*b, 11 + 2*b; t = 72 + 4*b
            a(f"""v_cndmask_b32 v80, {D_(r1)}, {D_(r0)}, s[48:49]
            v_cvt_pk_bf16_f32 v{t}, {D_(r0)}, {D_(r0)}
            v_cvt_pk_bf16_f32 v{t+1}, {D_(r0)}, {D_(r0)}
            v_cvt_pk_bf16_f32 v{t+2}, v80, {D_(r1)}
            v_cvt_pk_bf16_f32 v{t+3}, {D_(r1)}, {D_(r1)}""")
            a.lds(f"ds_write_b128 v8, {v(t,4)} offset:{2048+512*b}", "kw")
    def put_u(self, a, U):
        C = self
        a.wait(vm=["u"])
        b = U + 30
        a(f"v_cndmask_b32 v{b+7}, v{b+7}, 0, s[52:53]\nv_cndmask_b32 v{b+8}, v{b+8}, 0, s[52:53]")
        for i in range(4):
            b = U + 10*i; t = 96 + 8*(i % 2)
            Dw = [b, b+1, b+2, b+3, b+7, b+8]
            for j in range(4): a(f"v_alignbit_b32 v{t+j}, v{Dw[j+1]}, v{Dw[j]}, 16")
            for j in range(4): a(f"v_alignbit_b32 v{t+4+j}, v{Dw[j+2]}, v{Dw[j+1]}, 16")
            a.lds(f"ds_write_b128 v14, {v(b,4)} offset:{1024*i}", "uw")
            a.lds(f"ds_write_b128 v14, {v(t,4)} offset:{C.US+1024*i}", "uw")
            a.lds(f"ds_write_b128 v14, {v(b+4,4)} offset:{2*C.US+1024*i}", "uw")
            a.lds(f"ds_write_b128 v14, {v(t+4,4)} offset:{3*C.US+1024*i}", "uw")
        a(f"""
        v_lshrrev_b32 v96, 4, v0
        s_movk_i32 s47, {C.US}
        v_mul_lo_u32 v96, v96, s47
        v_and_b32 v97, 15, v0
        v_lshl_add_u32 v96, v97, 2, v96
        v_add_u32 v96, s46, v96
        v_mov_b32 v97, 0
        """)
        a.lds("ds_write_b32 v96, v97 offset:4096", "uw")
    def conv(self, a, s_ch, sc="", mid=None):
        C = self
        a.wait(lg="all")
        def kreg(par, j): return ar(32 + 64*par + 4*j, 4)
        def ureg(par, m, h=None):
            b = 64 + 64*par + 4*m
            return ar(b, 4) if h is None else ar(b + 2*h, 2)
        def loads(r):
            par = r % 2; t = []
            for j in range(8):
                t.append(lambda j=j: a.lds(f"ds_read_b64 {ureg(par,j,0)}, v13 offset:{3584 - 512*j + 64*r}", ("cu", r, j)))
                t.append(lambda j=j: a.lds(f"ds_read_b64 {ureg(par,j,1)}, v13 offset:{3584 - 512*j + 64*r + 8}", ("cu", r, j)))
                t.append(lambda j=j: a.lds(f"ds_read_b128 {kreg(par,j)}, v9 offset:{512*j + 64*r}", ("ck", r, j)))
            return t
        for t in loads(0): t()
        for r in range(8):
            par = r % 2
            q = loads(r+1) if r < 7 else []
            if r == 2 and mid: mid()
            pairs = sorted([(j, m) for j in range(8) for m in range(8) if j + m <= 7], key=lambda p: (max(p), p))
            seen = set()
            for n_, (j, m) in enumerate(pairs):
                i = j + m
                a.wait(lg=[("cu", r, m), ("ck", r, j)])
                Cc = "0" if (r == 0 and i not in seen) else ar(4*i, 4)
                seen.add(i)
                a(f"v_mfma_f32_16x16x32_bf16 {ar(4*i,4)}, {ureg(par,m)}, {kreg(par,j)}, {Cc}")
                if q and n_ >= 8: q.pop(0)()
            while q: q.pop(0)()
        a("s_nop 7")
        a(f"s_lshl_b32 s55, s{s_ch}, 12")
        for i in range(8):
            t = 96 + 8*(i % 2)
            for e in range(4): a(f"v_accvgpr_read_b32 v{t+e}, a{4*i+e}")
            a(f"v_cvt_pk_bf16_f32 v{t+4}, v{t}, v{t+1}\nv_cvt_pk_bf16_f32 v{t+5}, v{t+2}, v{t+3}")
            a.vmem(f"buffer_store_dwordx2 {v(t+4,2)}, v15, {sr(C.sYT,4)}, s55 offen offset:{512*i} {sc}", "y")

def emit_reduce(a, s_grp, s_wave, sP, sYT, sX, sOUT, lds_base=0, sc=""):
    a(f"""
    s_lshr_b32 s40, s{s_grp}, 2
    s_mul_i32 s41, s40, {(65536+8)//9}
    s_lshr_b32 s41, s41, 16
    s_mul_i32 s42, s41, 9
    s_sub_u32 s42, s40, s42
    s_bfe_u32 s43, s{s_grp}, 0x10001
    s_and_b32 s44, s{s_grp}, 1
    s_lshl_b32 s41, s41, 7
    s_lshl_b32 s43, s43, 6
    s_add_u32 s41, s41, s43
    s_lshl_b32 s42, s42, 6
    s_lshl_b32 s44, s44, 5
    s_add_u32 s42, s42, s44
    """)
    a(f"""
    s_lshl_b32 s45, s{s_grp}, 2
    s_add_u32 s45, s45, s{s_wave}
    s_mul_i32 s45, s45, {NSPLIT*1024}
    v_lshlrev_b32 v1, 4, v0
    """)
    a(f"""
    v_lshrrev_b32 v2, 3, v0
    s_lshl_b32 s46, s{s_wave}, 3
    s_add_u32 s46, s46, s42
    v_add_u32 v2, s46, v2
    v_lshlrev_b32 v2, 12, v2
    v_and_b32 v3, 7, v0
    v_lshl_add_u32 v2, v3, 4, v2
    s_lshl_b32 s46, s41, 1
    s_lshl_b32 s47, s{s_wave}, 10
    s_add_u32 m0, s47, {lds_base}
    s_nop 0
    """)
    a.vmem(f"buffer_load_dwordx4 v2, {sr(sYT,4)}, s46 offen {sc} lds", "ry")
    for s in range(NSPLIT):
        if s and s % 4 == 0: a("s_add_u32 s45, s45, 4096")
        a.vmem(f"buffer_load_dwordx4 {v(16+4*s,4)}, v1, {sr(sP,4)}, s45 offen offset:{1024*(s%4)} {sc}", ("rp", s))
    a(f"""
    v_and_b32 v4, 15, v0
    s_lshl_b32 s46, s{s_wave}, 4
    s_add_u32 s46, s46, s41
    v_add_u32 v4, s46, v4
    s_movk_i32 s47, 1152
    v_mul_lo_u32 v4, v4, s47
    v_lshrrev_b32 v5, 4, v0
    v_lshl_add_u32 v4, v5, 3, v4
    s_lshl_b32 s47, s42, 1
    """)
    a.vmem(f"buffer_load_dwordx2 v[64:65], v4, {sr(sX,4)}, s47 offen", "rx")
    a.vmem(f"buffer_load_dwordx2 v[66:67], v4, {sr(sX,4)}, s47 offen offset:32", "rx")
    a(f"""
    v_bfe_u32 v6, v0, 2, 2
    v_lshl_add_u32 v6, v5, 2, v6
    v_lshlrev_b32 v6, 7, v6
    v_and_b32 v7, 3, v0
    v_lshl_add_u32 v6, v7, 3, v6
    s_lshl_b32 s46, s{s_wave}, 5
    s_add_u32 s46, s46, {lds_base}
    v_add_u32 v6, s46, v6
    """)
    a.wait(vm=["ry"])
    a("s_barrier")
    a.lds("ds_read_b64_tr_b16 v[68:69], v6", "ry")
    a.lds("ds_read_b64_tr_b16 v[70:71], v6 offset:2048", "ry")
    def acc(src, first):
        for j in range(4):
            if first:
                a(f"v_lshlrev_b32 v{8+2*j}, 16, v{src+j}\nv_and_b32 v{9+2*j}, 0xffff0000, v{src+j}")
            else:
                a(f"v_lshlrev_b32 v72, 16, v{src+j}\nv_and_b32 v73, 0xffff0000, v{src+j}\nv_add_f32 v{8+2*j}, v{8+2*j}, v72\nv_add_f32 v{9+2*j}, v{9+2*j}, v73")
    for s in range(NSPLIT):
        a.wait(vm=[("rp", s)])
        acc(16+4*s, s == 0)
    a.wait(vm=["rx"], lg=["ry"])
    acc(64, False); acc(68, False)
    for j in range(4): a(f"v_cvt_pk_bf16_f32 v{74+j}, v{8+2*j}, v{9+2*j}")
    a.vmem(f"buffer_store_dwordx2 v[74:75], v4, {sr(sOUT,4)}, s47 offen", "ro")
    a.vmem(f"buffer_store_dwordx2 v[76:77], v4, {sr(sOUT,4)}, s47 offen offset:32", "ro")
```

```python
from parts import *
import hazard, sys

def wave_id(a):
    a("v_lshrrev_b32 v1, 6, v0\ns_nop 0\nv_readfirstlane_b32 s3, v1\nv_and_b32 v0, 63, v0")

def k_ln():
    a = Asm()
    a("s_cmp_ge_u32 s2, 64\ns_cbranch_scc1 L_ln_end")
    a("s_load_dwordx2 s[4:5], s[0:1], 0\ns_load_dwordx2 s[6:7], s[0:1], 96")
    wave_id(a)
    a("s_waitcnt lgkmcnt(0)")
    a.srd(12, "s4", "s5", XB)
    a.srd(16, "s6", "s7", XB)
    add64(a, 20, 6, OFF_XT); a(f"s_mov_b32 s22, {XB}\ns_mov_b32 s23, 0x20000")
    emit_ln(a, 2, 3, 12, 16, 20)
    a("L_ln_end:\ns_endpgm")
    return a.text()

def k_main():
    a = Asm()
    a("s_cmp_ge_u32 s2, 256\ns_cbranch_scc1 L_main_end")
    a("s_lshr_b32 s60, s2, 3\ns_and_b32 s61, s2, 7")
    a("s_cmp_ge_u32 s60, 24\ns_cbranch_scc1 L_conv")
    a("s_load_dwordx4 s[64:67], s[0:1], 64\ns_load_dwordx2 s[4:5], s[0:1], 96")
    wave_id(a)
    a("""s_and_b32 s62, s61, 1
    s_lshl_b32 s62, s62, 3
    s_and_b32 s40, s60, 7
    s_add_u32 s62, s62, s40
    s_lshr_b32 s63, s61, 1
    s_mul_i32 s63, s63, 3
    s_lshr_b32 s40, s60, 3
    s_add_u32 s63, s63, s40
    s_waitcnt lgkmcnt(0)
    s_mov_b64 s[6:7], s[64:65]
    s_mov_b64 s[8:9], s[66:67]""")
    add64(a, 10, 4, OFF_P)
    M = MLP()
    M.setup(a, 62, 63, 3)
    M.body(a)
    a("s_endpgm")
    a.reset()
    a("L_conv:")
    a("s_load_dwordx8 s[64:71], s[0:1], 8\ns_load_dwordx4 s[72:75], s[0:1], 40\ns_load_dwordx2 s[4:5], s[0:1], 96")
    wave_id(a)
    a("s_sub_u32 s60, s60, 24\ns_lshl_b32 s60, s60, 3\ns_add_u32 s60, s60, s61\ns_mul_i32 s62, s60, 9\ns_add_u32 s63, s62, 9\ns_add_u32 s62, s62, s3")
    a("s_waitcnt lgkmcnt(0)")
    C = Conv()
    for i, srd in enumerate((C.sLA, C.sAI, C.sCR, C.sCI)):
        a.srd(srd, f"s{64+2*i}", f"s{65+2*i}", D*N*2)
    a.srd(36, "s72", "s73", D*2); a.srd(56, "s74", "s75", D*2)
    add64(a, C.sXT, 4, OFF_XT); a(f"s_mov_b32 s{C.sXT+2}, {XB}\ns_mov_b32 s{C.sXT+3}, 0x20000")
    add64(a, C.sYT, 4, OFF_YT); a(f"s_mov_b32 s{C.sYT+2}, {XB}\ns_mov_b32 s{C.sYT+3}, 0x20000")
    C.setup(a, 3)
    a("L_cloop:")
    a.reset()
    C.load_params(a, 62, 120)
    C.load_u(a, 62, 128)
    C.kgen(a, 120)
    C.put_u(a, 128)
    C.conv(a, 62)
    a("s_add_u32 s62, s62, 4\ns_cmp_lt_u32 s62, s63\ns_cbranch_scc1 L_cloop")
    a("L_main_end:\ns_endpgm")
    return a.text()

def k_red():
    a = Asm()
    a("s_cmp_ge_u32 s2, 576\ns_cbranch_scc1 L_red_end")
    a("s_load_dwordx2 s[4:5], s[0:1], 0\ns_load_dwordx2 s[6:7], s[0:1], 96\ns_load_dwordx2 s[8:9], s[0:1], 80")
    wave_id(a)
    a("s_waitcnt lgkmcnt(0)")
    a.srd(12, "s4", "s5", XB)
    a.srd(16, "s8", "s9", XB)
    add64(a, 20, 6, OFF_YT); a(f"s_mov_b32 s22, {XB}\ns_mov_b32 s23, 0x20000")
    add64(a, 24, 6, OFF_P); a(f"s_mov_b32 s26, {NSPLIT*XB}\ns_mov_b32 s27, 0x20000")
    emit_reduce(a, 2, 3, 24, 20, 12, 16)
    a("L_red_end:\ns_endpgm")
    return a.text()

def build():
    txt = header(["kernel=ln_kernel grid=(64,1,1) block=(256,1,1) lds=37376",
                  "kernel=main_kernel grid=(256,1,1) block=(256,1,1) lds=163840",
                  "kernel=red_kernel grid=(576,1,1) block=(256,1,1) lds=4096"])
    txt += kernel_begin("ln_kernel") + k_ln() + kernel_desc("ln_kernel", 144, 144)
    txt += kernel_begin("main_kernel") + k_main() + kernel_desc("main_kernel", 512, 256)
    txt += kernel_begin("red_kernel") + k_red() + kernel_desc("red_kernel", 80, 80)
    return txt
if __name__ == "__main__":
    t = build()
    out = sys.argv[1] if len(sys.argv) > 1 else "v0.s"
    open(out, "w").write(t)
    print(len(hazard.check(t)), "hazards;", len(t), "bytes")
```
